```python
import torch

def _softmax(x, axis=-1):
    return torch.softmax(x, dim=axis)
def _gelu(x):
    return torch.nn.functional.gelu(x, approximate="tanh")
def _silu(x):
    return torch.nn.functional.silu(x)
def _sigmoid(x):
    return torch.sigmoid(x)
def _layernorm(x, axis=-1, eps=1e-5):
    m = x.mean(dim=axis, keepdim=True)
    v = x.var(dim=axis, keepdim=True, unbiased=False)
    return (x - m) / torch.sqrt(v + eps)
def _scatter_add(tgt, idx, src, axis=0):
    return tgt.clone().index_add_(axis, idx, src)
def _segment_sum(src, seg, n):
    out = torch.zeros((n,) + src.shape[1:], dtype=src.dtype)
    return out.index_add_(0, seg, src)
def _pad(x, pw):
    flat = tuple(v for pair in reversed(pw) for v in pair)
    return torch.nn.functional.pad(x, flat)

kernel_name = 'recurrent_scan__softmax_full_mha__swiglu_ffn__prompt'

def setup_inputs():

    _w = (lambda a: (lambda t: t.to(torch.bfloat16) if t.is_floating_point() else t)(torch.as_tensor(a)))
    def _A_setup():
        B, S, D = 1, 2048, 640
        return {
            "x": _w((lambda *s: torch.randn(*s, dtype=torch.bfloat16) * 0.05)(B, S, D)),
            "wqkv": _w((lambda *s: torch.randn(*s, dtype=torch.bfloat16) * 0.05)(D, 3 * D)),
            "wo": _w((lambda *s: torch.randn(*s, dtype=torch.bfloat16) * 0.05)(D, D)),
        }
    _A_in = _A_setup()

    def _B_setup():
        B, S, D, F = 1, 2048, 640, 1536
        return {
            "x": _w((lambda *s: torch.randn(*s, dtype=torch.bfloat16) * 0.05)(B, S, D)),
            "w_gate": _w((lambda *s: torch.randn(*s, dtype=torch.bfloat16) * 0.05)(D, F)),
            "w_up": _w((lambda *s: torch.randn(*s, dtype=torch.bfloat16) * 0.05)(D, F)),
            "w_down": _w((lambda *s: torch.randn(*s, dtype=torch.bfloat16) * 0.05)(F, D)),
        }
    _B_in = _B_setup()

    return {
        "A_x": _A_in["x"],
        "A_wqkv": _A_in["wqkv"],
        "A_wo": _A_in["wo"],
        "B_x": _B_in["x"],
        "B_w_gate": _B_in["w_gate"],
        "B_w_up": _B_in["w_up"],
        "B_w_down": _B_in["w_down"],
    }

def reference(A_x, A_wqkv, A_wo, B_x, B_w_gate, B_w_up, B_w_down):
    def _A_ref(x, wqkv, wo):
        B, S, D = x.shape
        H = 32; Dh = D // H
        qkv = (lambda x, *d: x.permute(*d))((x @ wqkv).reshape(B, S, 3, H, Dh), 2, 0, 3, 1, 4)
        q, k, v = qkv[0], qkv[1], qkv[2]
        scale = Dh ** -0.5
        scores = torch.einsum("bhqd,bhkd->bhqk", q, k) * scale
        p = _softmax(scores, axis=-1)
        o = torch.einsum("bhqk,bhkd->bhqd", p, v)
        return (lambda x, *d: x.permute(*d))(o, 0, 2, 1, 3).reshape(B, S, D) @ wo

    def _B_ref(x, w_gate, w_up, w_down):
        g = _silu(x @ w_gate)
        u = x @ w_up
        return (g * u) @ w_down

    x = A_x
    xn = _layernorm(x, axis=-1)
    s = _A_ref(xn, A_wqkv, A_wo)
    g = _silu(_B_ref(xn, B_w_gate, B_w_up, B_w_down))
    return x + s * g
```

```python
import struct

def f32(x):
    return "0x%08x" % struct.unpack("<I", struct.pack("<f", x))[0]

def vr(a, n=1):
    return f"v{a}" if n == 1 else f"v[{a}:{a+n-1}]"

def sr(a, n=1):
    return f"s{a}" if n == 1 else f"s[{a}:{a+n-1}]"

class Asm:
    def __init__(self):
        self.lines = []
    def __call__(self, *ls):
        for l in ls:
            if isinstance(l, (list, tuple)):
                self(*l)
            else:
                for x in l.split("\n"):
                    x = x.strip()
                    if not x:
                        continue
                    self.lines.append(x if x.endswith(":") or x.startswith(".") or x.startswith(";") else "    " + x)
    def text(self):
        return "\n".join(self.lines) + "\n"

def mfma16(d, a, b, c=None):
    cs = vr(d, 16) if c is None else (c if isinstance(c, str) else vr(c, 16))
    return f"v_mfma_f32_32x32x16_bf16 {vr(d,16)}, {vr(a,4)}, {vr(b,4)}, {cs}"

def mfma8(d, a, b, c=None):
    cs = vr(d, 16) if c is None else (c if isinstance(c, str) else vr(c, 16))
    return f"v_mfma_f32_32x32x8_bf16 {vr(d,16)}, {vr(a,2)}, {vr(b,2)}, {cs}"

def srd(d, base, nbytes, off=0):
    if off:
        l = [f"s_add_u32 s{d}, s{base}, {off}", f"s_addc_u32 s{d+1}, s{base+1}, 0"]
    else:
        l = [f"s_mov_b32 s{d}, s{base}", f"s_mov_b32 s{d+1}, s{base+1}"]
    return l + [f"s_mov_b32 s{d+2}, {nbytes}", f"s_mov_b32 s{d+3}, 0x00020000"]

def kernel_begin(name):
    return [f".globl {name}", ".p2align 8", f".type {name},@function", f"{name}:"]

def kernel_desc(name, vgpr, sgpr=96):
    acc = (vgpr + 3) // 4 * 4
    return f""".amdhsa_kernel {name}
  .amdhsa_next_free_vgpr {vgpr}
  .amdhsa_next_free_sgpr {sgpr}
  .amdhsa_accum_offset {acc}
  .amdhsa_group_segment_fixed_size 0
  .amdhsa_kernarg_size 80
  .amdhsa_user_sgpr_count 2
  .amdhsa_user_sgpr_kernarg_segment_ptr 1
  .amdhsa_system_sgpr_workgroup_id_x 1
.end_amdhsa_kernel
"""

def interleave(main, fill, lead=0):
    out = []
    n = max(1, len(main) - lead)
    j = 0
    for i, m in enumerate(main):
        out.append(m)
        e = min(len(fill), -(-len(fill) * (i + 1) // n))
        out += fill[j:e]
        j = e
    out += fill[j:]
    return out
```

```python
import math, sys
from asmlib import *

NAME = "recurrent_scan__softmax_full_mha__swiglu_ffn__prompt"
XB = 2048 * 1280
WS_XN = 0
WS_QK = WS_XN + XB
WS_V = WS_QK + 2 * XB
WS_H = WS_V + XB
WS_O = WS_H + 64 * 192 * 512
QSCALE = math.log2(math.e) / math.sqrt(20.0)
LOG2E = math.log2(math.e)


def wave_id(a, s):
    a("v_lshrrev_b32 v1, 6, v0", "s_nop 0", f"v_readfirstlane_b32 s{s}, v1", "v_and_b32 v0, 63, v0")


def k0(a):
    a(kernel_begin("ln_kernel"))
    a("s_cmp_ge_u32 s2, 128", "s_cbranch_scc1 L0_end")
    a("s_load_dwordx2 s[4:5], s[0:1], 0", "s_load_dwordx2 s[6:7], s[0:1], 72")
    a("v_lshrrev_b32 v1, 4, v0", "s_lshl_b32 s3, s2, 4", "v_add_u32 v1, s3, v1", "v_mul_u32_u24 v1, 1280, v1",
      "v_and_b32 v2, 15, v0", "v_lshl_add_u32 v1, v2, 4, v1")
    a("s_waitcnt lgkmcnt(0)")
    a(srd(8, 4, XB), srd(12, 6, XB, WS_XN))
    for i in range(5):
        a(f"buffer_load_dwordx4 {vr(4+4*i,4)}, v1, s[8:11], 0 offen offset:{256*i}")
    X = 24
    for i in range(5):
        a(f"s_waitcnt vmcnt({4-i})")
        for j in range(4):
            d = 4 + 4 * i + j
            a(f"v_lshlrev_b32 v{X+8*i+2*j}, 16, v{d}", f"v_and_b32 v{X+8*i+2*j+1}, 0xffff0000, v{d}")
    a(f"v_add_f32 v2, v{X}, v{X+1}", f"v_add_f32 v3, v{X+2}, v{X+3}")
    for i in range(4, 40, 2):
        a(f"v_add_f32 v2, v2, v{X+i}", f"v_add_f32 v3, v3, v{X+i+1}")
    a("v_add_f32 v2, v2, v3")
    def rowsum(r):
        for sh in (8, 4, 2, 1):
            a("s_nop 1", f"v_add_f32_dpp v{r}, v{r}, v{r} row_ror:{sh} row_mask:0xf bank_mask:0xf")
    rowsum(2)
    a(f"v_mul_f32 v2, {f32(1/640)}, v2")
    a("v_mov_b32 v3, 0", "v_mov_b32 v64, 0")
    for i in range(0, 40, 2):
        a(f"v_sub_f32 v65, v{X+i}, v2", f"v_sub_f32 v66, v{X+i+1}, v2", "v_fmac_f32 v3, v65, v65", "v_fmac_f32 v64, v66, v66")
    a("v_add_f32 v3, v3, v64")
    rowsum(3)
    a(f"v_mul_f32 v3, {f32(1/640)}, v3")
    a("v_cvt_pk_bf16_f32 v2, v2, v3", "v_and_b32 v3, 0xffff0000, v2", "v_lshlrev_b32 v2, 16, v2")
    a(f"v_add_f32 v3, {f32(1e-5)}, v3", "v_cvt_pk_bf16_f32 v3, v3, v3", "v_lshlrev_b32 v3, 16, v3",
      "v_sqrt_f32 v3, v3", "s_nop 0", "v_cvt_pk_bf16_f32 v3, v3, v3", "v_lshlrev_b32 v3, 16, v3", "v_rcp_f32 v3, v3")
    for i in range(5):
        for j in range(4):
            x = X + 8 * i + 2 * j
            d = 4 + 4 * i + j
            a(f"v_sub_f32 v{x}, v{x}, v2", f"v_sub_f32 v{x+1}, v{x+1}, v2", f"v_cvt_pk_bf16_f32 v{d}, v{x}, v{x+1}",
              f"v_lshlrev_b32 v{x}, 16, v{d}", f"v_and_b32 v{x+1}, 0xffff0000, v{d}",
              f"v_mul_f32 v{x}, v{x}, v3", f"v_mul_f32 v{x+1}, v{x+1}, v3", f"v_cvt_pk_bf16_f32 v{d}, v{x}, v{x+1}")
        a(f"buffer_store_dwordx4 {vr(4+4*i,4)}, v1, s[12:15], 0 offen offset:{256*i}")
    a("L0_end:", "s_endpgm")


XSLOT, NX = 16384, 3
WSLOT, NW = 20480, 5
WBASE = XSLOT * NX

def silu_mul(a, G, U, T, sneg):
    for i in range(0, 16, 4):
        t = T + 8
        for j in range(4):
            a(f"v_mul_f32 v{t+j}, s{sneg}, v{G+i+j}")
        for j in range(4):
            a(f"v_exp_f32 v{t+j}, v{t+j}")
        for j in range(4):
            a(f"v_mul_f32 v{G+i+j}, v{G+i+j}, v{U+i+j}")
        for j in range(4):
            a(f"v_add_f32 v{t+j}, 1.0, v{t+j}")
        for j in range(4):
            a(f"v_rcp_f32 v{t+j}, v{t+j}")
        a("s_nop 0")
        for j in range(4):
            a(f"v_mul_f32 v{G+i+j}, v{G+i+j}, v{t+j}")
        a(f"v_cvt_pk_bf16_f32 v{T+i//2}, v{G+i}, v{G+i+1}", f"v_cvt_pk_bf16_f32 v{T+i//2+1}, v{G+i+2}, v{G+i+3}")


def k1(a):
    a(kernel_begin("gemm1_kernel"))
    a("s_cmp_ge_u32 s2, 256", "s_cbranch_scc1 L1_end")
    a("s_load_dwordx2 s[4:5], s[0:1], 72", "s_load_dwordx2 s[6:7], s[0:1], 8", "s_load_dwordx4 s[8:11], s[0:1], 32")
    sW, sTB, sCG = 3, 12, 13
    wave_id(a, sW)
    a("s_and_b32 s14, s2, 7", "s_lshr_b32 s15, s2, 3",
      "s_and_b32 s16, s14, 1", "s_lshl_b32 s16, s16, 3", "s_and_b32 s17, s15, 7", f"s_add_u32 s{sTB}, s16, s17",
      "s_lshr_b32 s16, s14, 1", "s_lshl_b32 s16, s16, 2", "s_lshr_b32 s17, s15, 3", f"s_add_u32 s{sCG}, s16, s17")
    sFA, sU2, sU3, sU4 = 14, 15, 16, 17
    a(f"s_lshl_b32 s18, s{sCG}, 1", f"s_add_u32 s19, s{sCG}, 8", f"s_cmp_lt_u32 s{sCG}, 8", f"s_cselect_b32 s{sFA}, s18, s19")
    a(f"s_sub_u32 s19, s{sCG}, 8", "s_mul_i32 s19, s19, 3", "s_add_u32 s18, s18, 1", "s_add_u32 s20, s19, 1", "s_add_u32 s21, s19, 2",
      f"s_add_u32 s22, s{sCG}, 20", f"s_add_u32 s23, s{sCG}, 14",
      f"s_cmp_lt_u32 s{sCG}, 14", "s_cselect_b32 s21, s21, s23",
      f"s_cmp_lt_u32 s{sCG}, 8", f"s_cselect_b32 s{sU2}, s18, s19", f"s_cselect_b32 s{sU3}, s18, s20", f"s_cselect_b32 s{sU4}, s22, s21")
    a("s_waitcnt lgkmcnt(0)")
    a(f"s_cmp_ge_u32 s{sW}, 8", "s_cbranch_scc1 L1_loader")

    A, F0, F1 = 8, 88, 112
    vWl, vWc, vX0, vXc = 2, 3, 136, 4
    sTW, sP, sWs, sXs, sCnt = 18, 19, 20, 21, 22
    a(f"s_and_b32 s{sTW}, s{sW}, 3", f"s_lshr_b32 s{sP}, s{sW}, 2")
    a("v_lshrrev_b32 v1, 5, v0", f"v_lshlrev_b32 v{vWl}, 10, v1",
      "v_bfe_u32 v4, v0, 2, 2", f"v_lshl_add_u32 v{vWl}, v4, 6, v{vWl}",
      "v_bfe_u32 v4, v0, 4, 1", f"v_lshl_add_u32 v{vWl}, v4, 5, v{vWl}",
      "v_and_b32 v4, 1, v0", f"v_lshl_add_u32 v{vWl}, v4, 4, v{vWl}",
      "v_bfe_u32 v4, v0, 1, 1", f"v_lshl_add_u32 v{vWl}, v4, 3, v{vWl}",
      f"s_lshl_b32 s23, s{sP}, 8", f"v_add_u32 v{vWl}, s23, v{vWl}")
    a("v_and_b32 v4, 31, v0", "v_bfe_u32 v5, v0, 1, 3", "v_xor_b32 v5, v5, v1", "v_lshlrev_b32 v5, 4, v5",
      f"v_lshl_add_u32 v{vX0}, v4, 7, v5", f"s_lshl_b32 s23, s{sTW}, 12", f"v_add_u32 v{vX0}, s23, v{vX0}")
    for i in range(80):
        a(f"v_mov_b32 v{A+i}, 0")
    a(f"s_mov_b32 s{sWs}, {WBASE}", f"s_mov_b32 s{sXs}, 0", f"s_mov_b32 s{sCnt}, 10")

    def reads(F, sp):
        r = [f"ds_read_b128 {vr(F,4)}, v{vXc+sp}"]
        for lc in range(5):
            for e in range(2):
                r.append(f"ds_read_b64_tr_b16 {vr(F+4+4*lc+2*e,2)}, v{vWc} offset:{lc*4096+(sp&1)*2048+e*512}")
        return r
    def mms(F, vlast):
        m = [mfma16(A + 16 * lc, F + 4 + 4 * lc, F) for lc in range(4)]
        m.append(mfma16(A + 64, F, F + 20) if vlast else mfma16(A + 64, F + 20, F))
        return m
    def setw():
        return [f"v_add_u32 v{vWc}, s{sWs}, v{vWl}", f"s_add_u32 s{sWs}, s{sWs}, {WSLOT}",
                f"s_cmp_eq_u32 s{sWs}, {WBASE+NW*WSLOT}", f"s_cselect_b32 s{sWs}, {WBASE}, s{sWs}"]
    def setx():
        return [f"v_add_u32 v{vXc}, s{sXs}, v{vX0}", f"s_add_u32 s{sXs}, s{sXs}, {XSLOT}",
                f"v_xor_b32 v{vXc+1}, 32, v{vXc}", f"s_cmp_eq_u32 s{sXs}, {NX*XSLOT}",
                f"v_xor_b32 v{vXc+2}, 64, v{vXc}", f"s_cselect_b32 s{sXs}, 0, s{sXs}", f"v_xor_b32 v{vXc+3}, 0x60, v{vXc}"]
    a(setx(), setw(), "s_barrier", reads(F0, 0))
    a(f"s_cmp_lt_u32 s{sU4}, 20", "s_cbranch_scc1 L1_midT", "s_branch L1_midN")
    for tag, vlast in (("T", False), ("N", True)):
        a(f"L1_top{tag}:")
        a(setx(), setw(), "s_barrier")
        a("s_waitcnt lgkmcnt(0)", interleave(mms(F1, vlast), reads(F0, 0), 1))
        a(f"L1_mid{tag}:")
        a("s_waitcnt lgkmcnt(0)", interleave(mms(F0, vlast), reads(F1, 1), 1))
        a(setw(), "s_barrier")
        a("s_waitcnt lgkmcnt(0)", interleave(mms(F1, vlast), reads(F0, 2), 1))
        a("s_waitcnt lgkmcnt(0)", interleave(mms(F0, vlast), reads(F1, 3), 1))
        a(f"s_sub_u32 s{sCnt}, s{sCnt}, 1", f"s_cmp_lg_u32 s{sCnt}, 0", f"s_cbranch_scc1 L1_top{tag}")
        a("s_waitcnt lgkmcnt(0)", mms(F1, vlast))
        a("s_branch L1_epi" if tag == "T" else "")
    a("L1_epi:")
    sTile, sO, sSc, sNeg = 23, 36, 37, 38
    T = F0
    a(srd(24, 4, 2 * XB, WS_QK), srd(28, 4, XB, WS_V), srd(32, 4, 64 * 192 * 512, WS_H))
    a(f"s_lshl_b32 s{sTile}, s{sTB}, 2", f"s_add_u32 s{sTile}, s{sTile}, s{sTW}", f"s_mov_b32 s{sNeg}, {f32(-LOG2E)}")
    a("v_lshlrev_b32 v2, 4, v0", "s_nop 7")
    def qk_store(acc, sU):
        a(f"s_mul_i32 s{sO}, s{sTile}, 160", f"s_lshl_b32 s39, s{sU}, 3", f"s_add_u32 s{sO}, s{sO}, s39",
          f"s_lshl_b32 s39, s{sP}, 2", f"s_add_u32 s{sO}, s{sO}, s39", f"s_lshl_b32 s{sO}, s{sO}, 9",
          f"s_cmp_lt_u32 s{sU}, 10", f"s_cselect_b32 s{sSc}, {f32(QSCALE)}, 1.0")
        for i in range(16):
            a(f"v_mul_f32 v{acc+i}, s{sSc}, v{acc+i}")
        for i in range(8):
            a(f"v_cvt_pk_bf16_f32 v{acc+i}, v{acc+2*i}, v{acc+2*i+1}")
        a(f"buffer_store_dwordx4 {vr(acc,4)}, v2, s[24:27], s{sO} offen",
          f"buffer_store_dwordx4 {vr(acc+4,4)}, v2, s[24:27], s{sO} offen offset:1024")
    def ffn_store(G, U, sF):
        a(f"s_mul_i32 s{sO}, s{sTile}, 192", f"s_lshl_b32 s39, s{sF}, 3", f"s_add_u32 s{sO}, s{sO}, s39",
          f"s_lshl_b32 s39, s{sP}, 2", f"s_add_u32 s{sO}, s{sO}, s39", f"s_lshl_b32 s{sO}, s{sO}, 9")
        silu_mul(a, G, U, T, sNeg)
        a(f"buffer_store_dwordx4 {vr(T,4)}, v2, s[32:35], s{sO} offen",
          f"buffer_store_dwordx4 {vr(T+4,4)}, v2, s[32:35], s{sO} offen offset:1024", "s_nop 1")
    a(f"s_cmp_lt_u32 s{sU4}, 20", "s_cbranch_scc0 L1_v")
    qk_store(A + 64, sU4)
    a("s_branch L1_e23")
    a("L1_v:")
    acc = A + 64
    a("v_and_b32 v3, 0x13, v0", "v_bfe_u32 v4, v0, 2, 1", "v_lshl_add_u32 v3, v4, 3, v3", "v_bfe_u32 v4, v0, 3, 1", "v_lshl_add_u32 v3, v4, 2, v3",
      f"s_sub_u32 s39, s{sU4}, 20", "s_lshl_b32 s39, s39, 6", f"s_lshl_b32 s40, s{sP}, 5", "s_add_u32 s39, s39, s40", "v_add_u32 v3, s39, v3",
      "v_mul_u32_u24 v4, 3277, v3", "v_lshrrev_b32 v4, 16, v4", "v_mul_u32_u24 v5, 20, v4", "v_sub_u32 v3, v3, v5",
      "v_mul_u32_u24 v4, 81920, v4", "v_lshl_add_u32 v3, v3, 4, v4", "v_lshrrev_b32 v4, 5, v0", "v_mul_u32_u24 v4, 320, v4", "v_add_u32 v3, v3, v4",
      f"s_mul_i32 s{sO}, s{sTile}, 1280")
    for i in range(8):
        a(f"v_cvt_pk_bf16_f32 v{acc+i}, v{acc+2*i}, v{acc+2*i+1}")
    a(f"buffer_store_dwordx4 {vr(acc,4)}, v3, s[28:31], s{sO} offen",
      f"buffer_store_dwordx4 {vr(acc+4,4)}, v3, s[28:31], s{sO} offen offset:640")
    a("L1_e23:")
    a(f"s_cmp_lt_u32 s{sCG}, 8", "s_cbranch_scc1 L1_f2", f"s_cmp_eq_u32 s{sCG}, 15", "s_cbranch_scc1 L1_f1")
    qk_store(A + 32, sU2)
    qk_store(A + 48, sU3)
    a("s_branch L1_f1")
    a("L1_f2:")
    ffn_store(A + 32, A + 48, sU2)
    a("L1_f1:")
    ffn_store(A, A + 16, sFA)
    a("s_endpgm")

    a("L1_loader:")
    sL = 18
    a(f"s_sub_u32 s{sL}, s{sW}, 8")
    a(srd(24, 4, XB, WS_XN), srd(28, 8, 640 * 3072), srd(32, 10, 640 * 3072), srd(44, 6, 640 * 3840))
    a(f"s_cmp_lt_u32 s{sCG}, 8",
      "s_cselect_b32 s36, s8, s6", "s_cselect_b32 s37, s9, s7", f"s_cselect_b32 s38, {640*3072}, s46", "s_mov_b32 s39, 0x00020000",
      "s_cselect_b32 s40, s10, s6", "s_cselect_b32 s41, s11, s7", "s_mov_b32 s42, s38", "s_mov_b32 s43, 0x00020000",
      "s_movk_i32 s19, 3840", "s_cselect_b32 s19, 3072, s19")
    vF, vQ, vM, vXe, vXo = 2, 3, 4, 5, 6
    a("v_lshrrev_b32 v7, 5, v0", "v_bfe_u32 v8, v0, 2, 2", "v_lshl_add_u32 v7, v7, 2, v8", f"s_lshl_b32 s20, s{sL}, 3", "v_add_u32 v7, s20, v7",
      "v_bfe_u32 v8, v0, 4, 1", "v_and_b32 v9, 3, v0", "v_lshlrev_b32 v9, 4, v9", "v_lshl_add_u32 v8, v8, 6, v9",
      f"v_mul_u32_u24 v{vF}, 3072, v7", f"v_add_u32 v{vF}, v{vF}, v8",
      f"v_mul_u32_u24 v{vQ}, 3840, v7", f"v_add_u32 v{vQ}, v{vQ}, v8",
      f"v_mul_u32_u24 v{vM}, s19, v7", f"v_add_u32 v{vM}, v{vM}, v8")
    a("v_lshrrev_b32 v7, 3, v0", "v_lshrrev_b32 v8, 4, v0", "v_and_b32 v9, 7, v0", "v_xor_b32 v8, v8, v9", "v_lshlrev_b32 v8, 4, v8",
      f"v_mul_u32_u24 v{vXe}, 1280, v7", f"v_add_u32 v{vXe}, v{vXe}, v8", f"v_xor_b32 v{vXo}, 64, v{vXe}")
    so = [48, 48, 49, 50, 51]
    sStepM, sXo, sWd, sXd, sCnt, sT = 52, 53, 54, 55, 56, 57
    a(f"s_lshl_b32 s48, s{sFA}, 7", f"s_lshl_b32 s49, s{sU2}, 7", f"s_lshl_b32 s50, s{sU3}, 7", f"s_lshl_b32 s51, s{sU4}, 7",
      f"s_lshl_b32 s{sStepM}, s19, 5",
      f"s_lshl_b32 s{sXo}, s{sTB}, 2", f"s_add_u32 s{sXo}, s{sXo}, s{sL}", f"s_mul_i32 s{sXo}, s{sXo}, {32*1280}",
      f"s_lshl_b32 s{sWd}, s{sL}, 10", f"s_add_u32 s{sWd}, s{sWd}, {WBASE}", f"s_lshl_b32 s{sXd}, s{sL}, 12",
      f"s_add_u32 s58, s{sWd}, {NW*WSLOT}", f"s_mov_b32 s59, s{sWd}", f"s_add_u32 s60, s{sXd}, {NX*XSLOT}", f"s_mov_b32 s61, s{sXd}")
    def ldw():
        r = []
        for lc, (v, s) in enumerate(((vF, 28), (vF, 32), (vM, 36), (vM, 40), (vQ, 44))):
            r += [f"s_add_u32 m0, s{sWd}, {lc*4096}", "s_nop 0", f"buffer_load_dwordx4 v{v}, {sr(s,4)}, s{so[lc]} offen lds"]
        r += [f"s_add_u32 s48, s48, {32*3072}", f"s_add_u32 s49, s49, s{sStepM}", f"s_add_u32 s50, s50, s{sStepM}", f"s_add_u32 s51, s51, {32*3840}",
              f"s_add_u32 s{sWd}, s{sWd}, {WSLOT}", f"s_cmp_eq_u32 s{sWd}, s58", f"s_cselect_b32 s{sWd}, s59, s{sWd}"]
        return r
    def ldx():
        r = []
        for p in range(4):
            r += [f"s_add_u32 m0, s{sXd}, {p*1024}", f"s_add_u32 s{sT}, s{sXo}, {p*8*1280}",
                  f"buffer_load_dwordx4 v{vXo if p&1 else vXe}, s[24:27], s{sT} offen lds"]
        r += [f"s_add_u32 s{sXo}, s{sXo}, 128", f"s_add_u32 s{sXd}, s{sXd}, {XSLOT}", f"s_cmp_eq_u32 s{sXd}, s60", f"s_cselect_b32 s{sXd}, s61, s{sXd}"]
        return r
    a(ldx(), ldw(), ldw(), f"s_mov_b32 s{sCnt}, 9")
    a("L1_ld:")
    a(ldx(), ldw(), "s_waitcnt vmcnt(14)", "s_barrier", ldw(), "s_waitcnt vmcnt(14)", "s_barrier")
    a(f"s_sub_u32 s{sCnt}, s{sCnt}, 1", f"s_cmp_lg_u32 s{sCnt}, 0", "s_cbranch_scc1 L1_ld")
    a("s_waitcnt vmcnt(5)", "s_barrier", "s_waitcnt vmcnt(0)", "s_barrier")
    a("L1_end:", "s_endpgm")


ASLOT = 22528

def k2(a):
    a(kernel_begin("attn_kernel"))
    a("s_cmp_ge_u32 s2, 256", "s_cbranch_scc1 L2_end")
    a("s_load_dwordx2 s[4:5], s[0:1], 72")
    sW, sHd, sQb, sOdd, sM0, sXo = 3, 6, 7, 8, 9, 10
    wave_id(a, sW)
    a("s_and_b32 s11, s2, 7", "s_lshr_b32 s12, s2, 3", f"s_and_b32 s{sQb}, s12, 7", "s_lshr_b32 s12, s12, 3",
      "s_lshl_b32 s11, s11, 2", f"s_add_u32 s{sHd}, s11, s12",
      f"s_and_b32 s{sOdd}, s{sHd}, 1", f"s_lshr_b32 s11, s{sHd}, 1", "s_mul_i32 s11, s11, 5", f"s_add_u32 s{sXo}, s11, 2",
      f"s_mul_i32 s12, s{sOdd}, 3", f"s_add_u32 s{sM0}, s11, s12")
    a("s_waitcnt lgkmcnt(0)")
    a(srd(24, 4, 2 * XB, WS_QK), srd(28, 4, XB, WS_V), srd(32, 4, XB, WS_O))
    a(f"s_cmp_ge_u32 s{sW}, 8", "s_cbranch_scc1 L2_loader")

    SA, SB, O, CM, P, Q, QA, QB, K, KX, VA, VB0, VB1 = 16, 32, 48, 64, 80, 88, 92, 94, 96, 100, 104, 108, 112
    vL16, vKx, vV, cK, cKx, cV, vQx, vM = 2, 3, 4, 5, 6, 7, 8, 9
    sQt, sSl, sCnt, sT = 13, 14, 15, 16
    a("s_mov_b32 s20, 0x000fffff", "s_mov_b32 s21, 0x000fffff")
    a(f"s_lshl_b32 s{sQt}, s{sQb}, 3", f"s_add_u32 s{sQt}, s{sQt}, s{sW}")
    a(f"v_lshlrev_b32 v{vL16}, 4, v0", f"s_lshl_b32 s11, s{sOdd}, 3", f"v_add_u32 v{vKx}, s11, v{vL16}",
      f"v_and_b32 v{vQx}, 0x1ff, v{vKx}")
    a(f"s_mul_i32 s12, s{sQt}, 160", f"s_add_u32 s{sT}, s12, s{sM0}", f"s_lshl_b32 s{sT}, s{sT}, 9",
      f"buffer_load_dwordx4 {vr(Q,4)}, v{vL16}, s[24:27], s{sT} offen",
      f"s_add_u32 s17, s12, s{sXo}", "s_lshl_b32 s17, s17, 9",
      f"buffer_load_dwordx2 {vr(QA,2)}, v{vQx}, s[24:27], s17 offen")
    a("v_and_b32 v10, 31, v0", "v_and_b32 v11, 3, v0", "v_bfe_u32 v12, v0, 2, 1", "v_lshl_add_u32 v11, v12, 3, v11",
      "v_bfe_u32 v12, v0, 3, 1", "v_lshl_add_u32 v11, v12, 2, v11", f"s_lshl_b32 s11, s{sOdd}, 2", "v_add_u32 v11, s11, v11",
      f"s_lshl_b32 s11, s{sOdd}, 4", "v_subrev_u32 v12, s11, v10", "v_cmp_gt_u32 vcc, 16, v10", "s_nop 1", "v_cndmask_b32 v11, v12, v11, vcc",
      "v_min_u32 v11, 19, v11", "v_lshrrev_b32 v12, 5, v0", "v_mul_u32_u24 v12, 320, v12", f"v_lshl_add_u32 v{vV}, v11, 4, v12")
    for i in range(12):
        a(f"v_mov_b32 v{VA+i}, 0x3f803f80")
    for i in range(16):
        a(f"v_mov_b32 v{O+i}, 0")
    for i in range(4):
        a(f"v_mov_b32 v{P+4+i}, 0")
    a(f"v_mov_b32 v{cK}, v{vL16}", f"v_mov_b32 v{cKx}, v{vKx}", f"v_add_u32 v{cV}, 12288, v{vV}")
    a("v_cmp_gt_u32 vcc, 32, v0", "s_nop 0", "s_waitcnt vmcnt(0)",
      f"v_cndmask_b32 v{QB}, v{QA}, v{O}, vcc", f"v_cndmask_b32 v{QB+1}, v{QA+1}, v{O}, vcc",
      f"v_cndmask_b32 v{QA}, 0, v{QA}, vcc", f"v_cndmask_b32 v{QA+1}, 0, v{QA+1}, vcc")
    koff = lambda b: (b >> 1) * 3072 + (b & 1) * 1024
    rdK = lambda b: f"ds_read_b128 {vr(K,4)}, v{cK} offset:{koff(b)}"
    rdKx = lambda b: f"ds_read_b64 {vr(KX,2)}, v{cKx} offset:{(b>>1)*3072+2048}"
    def rdV(t, par):
        return ["s_mov_b64 exec, s[20:21]", f"ds_read_b128 {vr(VA,4)}, v{cV} offset:{t*1280}",
                f"ds_read_b128 {vr(VB1 if par else VB0,4)}, v{cV} offset:{t*1280+640}", "s_mov_b64 exec, -1"]
    def rowmax(S, dst):
        a(f"v_max3_f32 v10, v{S}, v{S+1}, v{S+2}", f"v_max3_f32 v11, v{S+3}, v{S+4}, v{S+5}")
        a(f"v_max3_f32 v10, v10, v{S+6}, v{S+7}", f"v_max3_f32 v11, v11, v{S+8}, v{S+9}")
        a(f"v_max3_f32 v10, v10, v{S+10}, v{S+11}", f"v_max3_f32 v11, v11, v{S+12}, v{S+13}")
        a(f"v_max3_f32 v10, v10, v{S+14}, v{S+15}", f"v_max3_f32 v{dst}, v10, v11, v{dst}")
    def halfmax(r):
        a(f"v_mov_b32 v10, v{r}", "s_nop 1", f"v_permlane32_swap_b32 v10, v{r}", "s_nop 0", f"v_max_f32 v{r}, v10, v{r}")
    a("s_barrier", rdK(0), rdKx(0), f"v_mov_b32 v{vM}, 0xff800000", "s_waitcnt lgkmcnt(0)")
    a(mfma8(SA, KX, QA, "0"), mfma16(SA, K, Q), "s_nop 15")
    rowmax(SA, vM)
    halfmax(vM)
    for i in range(16):
        a(f"v_sub_f32 v{CM+i}, 0, v{vM}")
    for i in range(16):
        a(f"v_sub_f32 v{SA+i}, v{SA+i}, v{vM}")
    a(rdK(1), rdV(0, 0), f"s_mov_b32 s{sSl}, 0", f"s_mov_b32 s{sCnt}, 8", "s_branch L2_entry")

    def body(b):
        S, N = (SA, SB) if b % 2 == 0 else (SB, SA)
        e = lambda i: f"v_exp_f32 v{S+i}, v{S+i}"
        c = lambda i: f"v_cvt_pk_bf16_f32 v{P+i}, v{S+2*i}, v{S+2*i+1}"
        if b % 2:
            a("s_waitcnt lgkmcnt(3)")
        a(mfma8(N, KX, QB if b % 2 == 0 else QA, CM))
        if b % 2 == 0:
            a(rdKx(b))
        a([e(i) for i in range(5)])
        a(mfma16(O, VB1 if b % 2 == 0 else VB0, P + 4))
        a([e(i) for i in range(5, 8)], [c(i) for i in range(4)])
        a(f"s_waitcnt lgkmcnt({1 if b % 2 == 0 else 0})")
        a(mfma16(N, K, Q), rdK(b))
        a([e(i) for i in range(8, 13)])
        a(mfma16(O, VA, P), rdV((b - 1) % 8, (b + 1) % 2))
        if b == 0:
            a(f"v_add_u32 v{cV}, s{sT}, v{vV}")
        a([e(i) for i in range(13, 16)], [c(i) for i in range(4, 8)])
    a("L2_top:")
    a(f"s_add_u32 s{sSl}, s{sSl}, {ASLOT}", f"s_cmp_eq_u32 s{sSl}, {3*ASLOT}", f"s_cselect_b32 s{sSl}, 0, s{sSl}",
      f"v_add_u32 v{cK}, s{sSl}, v{vL16}", f"v_add_u32 v{cKx}, s{sSl}, v{vKx}", f"s_add_u32 s{sT}, s{sSl}, 12288", "s_barrier")
    body(0)
    body(1)
    a(f"s_sub_u32 s{sCnt}, s{sCnt}, 1", f"s_cmp_eq_u32 s{sCnt}, 0", "s_cbranch_scc1 L2_fin")
    a("L2_entry:")
    for b in range(2, 8):
        body(b)
    a("s_branch L2_top")
    a("L2_fin:")
    a(mfma16(O, VB1, P + 4), "s_waitcnt lgkmcnt(0)", "s_nop 15")
    a(f"v_cmp_nle_f32 vcc, {f32(2.0**-20)}, v{O+12}", f"s_mov_b32 s11, {f32(2.0**40)}", f"v_cmp_nge_f32 s[18:19], s11, v{O+12}",
      "s_or_b64 vcc, vcc, s[18:19]", "s_cbranch_vccnz L2_slow")
    a("L2_out:")
    a(f"v_rcp_f32 v10, v{O+12}", f"s_mul_i32 s12, s{sQt}, 80", f"s_add_u32 s{sT}, s12, s{sM0}", f"s_lshl_b32 s{sT}, s{sT}, 9",
      f"s_add_u32 s17, s12, s{sXo}", "s_lshl_b32 s17, s17, 9")
    for i in range(12):
        a(f"v_mul_f32 v{O+i}, v{O+i}, v10")
    for i in range(6):
        a(f"v_cvt_pk_bf16_f32 v{P+i}, v{O+2*i}, v{O+2*i+1}")
    a(f"buffer_store_dwordx4 {vr(P,4)}, v{vL16}, s[32:35], s{sT} offen",
      "s_mov_b32 exec_hi, 0",
      f"buffer_store_dwordx2 {vr(P+4,2)}, v{vQx}, s[32:35], s17 offen")
    a("s_endpgm")

    a("L2_slow:")
    sK, sKx, sV = 36, 37, 38
    def slow_init():
        a(f"s_add_u32 s{sK}, s{sM0}, 80", f"s_lshl_b32 s{sK}, s{sK}, 9", f"s_add_u32 s{sKx}, s{sXo}, 80", f"s_lshl_b32 s{sKx}, s{sKx}, 9",
          f"s_mul_i32 s{sV}, s{sHd}, 81920", f"s_mov_b32 s{sCnt}, 64")
    def slow_qk():
        a(f"buffer_load_dwordx4 {vr(K,4)}, v{vL16}, s[24:27], s{sK} offen", f"buffer_load_dwordx2 {vr(KX,2)}, v{vQx}, s[24:27], s{sKx} offen",
          f"s_add_u32 s{sK}, s{sK}, 81920", f"s_add_u32 s{sKx}, s{sKx}, 81920", "s_waitcnt vmcnt(0)",
          mfma8(SA, KX, QA, "0"), mfma16(SA, K, Q), "s_nop 15")
    slow_init()
    a(f"v_mov_b32 v{vM}, 0xff800000")
    a("L2_s1:")
    slow_qk()
    rowmax(SA, vM)
    a(f"s_sub_u32 s{sCnt}, s{sCnt}, 1", f"s_cmp_lg_u32 s{sCnt}, 0", "s_cbranch_scc1 L2_s1")
    halfmax(vM)
    slow_init()
    for i in range(16):
        a(f"v_mov_b32 v{O+i}, 0")
    a("L2_s2:")
    a("s_mov_b64 exec, s[20:21]", f"buffer_load_dwordx4 {vr(VA,4)}, v{vV}, s[28:31], s{sV} offen",
      f"buffer_load_dwordx4 {vr(VB0,4)}, v{vV}, s[28:31], s{sV} offen offset:640", "s_mov_b64 exec, -1", f"s_add_u32 s{sV}, s{sV}, 1280")
    slow_qk()
    for i in range(16):
        a(f"v_sub_f32 v{SA+i}, v{SA+i}, v{vM}")
    for i in range(16):
        a(f"v_exp_f32 v{SA+i}, v{SA+i}")
    for i in range(8):
        a(f"v_cvt_pk_bf16_f32 v{P+i}, v{SA+2*i}, v{SA+2*i+1}")
    a("s_nop 1", mfma16(O, VA, P), mfma16(O, VB0, P + 4))
    a(f"s_sub_u32 s{sCnt}, s{sCnt}, 1", f"s_cmp_lg_u32 s{sCnt}, 0", "s_cbranch_scc1 L2_s2")
    a("s_nop 15", "s_branch L2_out")

    a("L2_loader:")
    sL, sK, sKx, sV, sD, sCnt, sT = 13, 14, 15, 16, 17, 18, 19
    a(f"s_sub_u32 s{sL}, s{sW}, 8", "v_lshlrev_b32 v2, 4, v0", "v_lshrrev_b32 v3, 5, v0", "v_mul_u32_u24 v3, 81920, v3",
      "v_and_b32 v4, 0x1ff, v2", "v_add_u32 v3, v3, v4")
    a(f"s_mul_i32 s11, s{sL}, 320", "s_add_u32 s11, s11, 80", f"s_add_u32 s{sK}, s11, s{sM0}", f"s_lshl_b32 s{sK}, s{sK}, 9",
      f"s_add_u32 s{sKx}, s11, s{sXo}", f"s_lshl_b32 s{sKx}, s{sKx}, 9",
      f"s_mul_i32 s{sV}, s{sHd}, 81920", f"s_mul_i32 s11, s{sL}, 2560", f"s_add_u32 s{sV}, s{sV}, s11",
      f"s_mul_i32 s20, s{sL}, 3072", "s_add_u32 s21, s11, 12288", f"s_mov_b32 s{sD}, 0")
    def ld():
        return [f"s_add_u32 m0, s{sD}, s20", f"s_add_u32 s{sT}, s{sK}, {81920-1024}",
                f"buffer_load_dwordx4 v2, s[24:27], s{sK} offen lds",
                f"buffer_load_dwordx4 v2, s[24:27], s{sT} offen offset:1024 lds",
                f"s_sub_u32 s{sT}, s{sKx}, 2048",
                f"buffer_load_dwordx4 v3, s[24:27], s{sT} offen offset:2048 lds",
                f"s_add_u32 m0, s{sD}, s21", f"s_add_u32 s{sK}, s{sK}, {8*81920}",
                f"buffer_load_dwordx4 v2, s[28:31], s{sV} offen lds",
                f"buffer_load_dwordx4 v2, s[28:31], s{sV} offen offset:1024 lds",
                "s_mov_b32 exec_hi, 0",
                f"buffer_load_dwordx4 v2, s[28:31], s{sV} offen offset:2048 lds",
                "s_mov_b32 exec_hi, -1",
                f"s_add_u32 s{sKx}, s{sKx}, {8*81920}", f"s_add_u32 s{sV}, s{sV}, 10240",
                f"s_add_u32 s{sD}, s{sD}, {ASLOT}", f"s_cmp_eq_u32 s{sD}, {3*ASLOT}", f"s_cselect_b32 s{sD}, 0, s{sD}"]
    a(f"s_mov_b32 s{sCnt}, 8")
    a("L2_ld:")
    a(ld(), "s_waitcnt vmcnt(0)", "s_barrier", f"s_sub_u32 s{sCnt}, s{sCnt}, 1", f"s_cmp_lg_u32 s{sCnt}, 0", "s_cbranch_scc1 L2_ld")
    a("s_barrier")
    a("L2_end:", "s_endpgm")


RSTR = 656
RW = 32 * RSTR
RBASE = 4 * 3 * 5120

def k3(a):
    a(kernel_begin("tail_kernel"))
    a("s_cmp_ge_u32 s2, 256", "s_cbranch_scc1 L3_end")
    a("s_load_dwordx2 s[4:5], s[0:1], 72", "s_load_dwordx2 s[6:7], s[0:1], 0", "s_load_dwordx2 s[8:9], s[0:1], 16",
      "s_load_dwordx4 s[12:15], s[0:1], 48")
    sW, sTT, sCQ = 3, 10, 11
    a("v_mov_b32 v9, v0")
    wave_id(a, sW)
    a("s_and_b32 s16, s2, 7", "s_lshr_b32 s17, s2, 3", f"s_and_b32 s{sCQ}, s17, 3", "s_lshr_b32 s17, s17, 2",
      "s_lshl_b32 s16, s16, 3", f"s_add_u32 s{sTT}, s16, s17")
    a("s_waitcnt lgkmcnt(0)")
    a(srd(24, 4, 64 * 192 * 512, WS_H), srd(28, 4, XB, WS_O), srd(32, 12, 1536 * 1280), srd(36, 8, 640 * 1280),
      srd(40, 6, XB), srd(44, 14, XB))
    AD, AS, FW, FX = 16, 96, 176, 196
    vL16, vSrc, vTr = 2, 3, 4
    sRing, sWd, sWo, sH, sO, sT = 16, 17, 18, 19, 20, 21
    a(f"v_lshlrev_b32 v{vL16}, 4, v0", "v_lshrrev_b32 v5, 2, v0", f"v_mul_u32_u24 v{vSrc}, 1280, v5", "v_and_b32 v5, 3, v0",
      f"v_lshl_add_u32 v{vSrc}, v5, 4, v{vSrc}")
    a(f"s_mul_i32 s{sRing}, s{sW}, {3*5120}")
    a("v_lshrrev_b32 v1, 5, v0", f"v_lshlrev_b32 v{vTr}, 9, v1",
      "v_bfe_u32 v5, v0, 2, 2", f"v_lshl_add_u32 v{vTr}, v5, 6, v{vTr}",
      "v_bfe_u32 v5, v0, 4, 1", f"v_lshl_add_u32 v{vTr}, v5, 5, v{vTr}",
      "v_and_b32 v5, 1, v0", f"v_lshl_add_u32 v{vTr}, v5, 4, v{vTr}",
      "v_bfe_u32 v5, v0, 1, 1", f"v_lshl_add_u32 v{vTr}, v5, 3, v{vTr}", f"v_add_u32 v{vTr}, s{sRing}, v{vTr}")
    a(f"s_mul_i32 s22, s{sCQ}, 320",
      f"s_mul_i32 s{sWd}, s{sW}, {384*1280}", f"s_add_u32 s{sWd}, s{sWd}, s22",
      f"s_mul_i32 s{sWo}, s{sW}, {160*1280}", f"s_add_u32 s{sWo}, s{sWo}, s22",
      f"s_mul_i32 s{sH}, s{sTT}, {192*512}", f"s_mul_i32 s23, s{sW}, {24*1024}", f"s_add_u32 s{sH}, s{sH}, s23",
      f"s_mul_i32 s{sO}, s{sTT}, {80*512}", f"s_mul_i32 s23, s{sW}, {10*1024}", f"s_add_u32 s{sO}, s{sO}, s23")
    steps = [("d", i) for i in range(24)] + [("o", i) for i in range(10)]
    def issue(n):
        kind, i = steps[n]
        sw, rw, sx, rx = (sWd, 32, sH, 24) if kind == "d" else (sWo, 36, sO, 28)
        for t in range(5):
            a(f"s_add_u32 m0, s{sRing}, {(n%3)*5120+t*1024}", f"s_add_u32 s{sT}, s{sw}, {i*16*1280+t*64}",
              f"buffer_load_dwordx4 v{vSrc}, {sr(rw,4)}, s{sT} offen lds")
        a(f"s_add_u32 s{sT}, s{sx}, {i*1024}", f"buffer_load_dwordx4 {vr(FX+4*(n%3),4)}, v{vL16}, {sr(rx,4)}, s{sT} offen")
    issue(0)
    issue(1)
    for n, (kind, i) in enumerate(steps):
        if n + 2 < len(steps):
            issue(n + 2)
        a(f"s_waitcnt vmcnt({6*min(2, len(steps)-1-n)})")
        for t in range(5):
            for e in range(2):
                a(f"ds_read_b64_tr_b16 {vr(FW+4*t+2*e,2)}, v{vTr} offset:{(n%3)*5120+t*1024+e*256}")
        acc = AD if kind == "d" else AS
        for t in range(5):
            a(f"s_waitcnt lgkmcnt({8-2*t})", mfma16(acc + 16 * t, FW + 4 * t, FX + 4 * (n % 3), "0" if i == 0 else None))
    vWr, vIt, vG = 5, 10, FW
    a("v_and_b32 v6, 31, v0", f"v_mul_u32_u24 v{vWr}, {RSTR}, v6", f"v_lshl_add_u32 v{vWr}, v1, 5, v{vWr}",
      f"s_mul_i32 s23, s{sW}, {RW}", f"s_add_u32 s23, s23, {RBASE}", f"v_add_u32 v{vWr}, s23, v{vWr}")
    for k in range(3):
        a(f"v_add_u32 v6, {256*k}, v9", "v_mul_u32_u24 v7, 3277, v6", "v_lshrrev_b32 v7, 16, v7", "v_mul_u32_u24 v8, 20, v7", "v_sub_u32 v8, v6, v8",
          f"v_mul_u32_u24 v{vIt+k}, {RSTR}, v7", f"v_lshl_add_u32 v{vIt+k}, v8, 5, v{vIt+k}", f"v_add_u32 v{vIt+k}, {RBASE}, v{vIt+k}",
          f"v_mul_u32_u24 v{vIt+3+k}, 1280, v7", f"v_lshl_add_u32 v{vIt+3+k}, v8, 4, v{vIt+3+k}")
    a(f"s_mul_i32 s{sT}, s{sTT}, {32*1280}", f"s_add_u32 s{sT}, s{sT}, s22", f"s_mov_b32 s48, {f32(-LOG2E)}")
    XR = 200
    def third(fn):
        fn(0); fn(1)
        third.n += 1
        a(f"s_cmp_ge_u32 s{sW}, 2", f"s_cbranch_scc1 L3_skip{third.n}")
        fn(2)
        a(f"L3_skip{third.n}:")
    third.n = 0
    third(lambda k: a(f"buffer_load_dwordx4 {vr(XR+4*k,4)}, v{vIt+3+k}, s[40:43], s{sT} offen"))
    def dump(acc):
        for t in range(5):
            for g in range(4):
                a(f"ds_write_b128 v{vWr}, {vr(acc+16*t+4*g,4)} offset:{t*128+(g>>1)*64+(g&1)*16}")
        a("s_waitcnt lgkmcnt(0)", "s_barrier")
    def gather(k, Tm):
        for w in range(4):
            a(f"ds_read_b128 {vr(Tm+8*w,4)}, v{vIt+k} offset:{w*RW}", f"ds_read_b128 {vr(Tm+8*w+4,4)}, v{vIt+k} offset:{w*RW+16}")
        a("s_waitcnt lgkmcnt(0)")
        for i in range(8):
            a(f"v_add_f32 v{Tm+i}, v{Tm+i}, v{Tm+8+i}", f"v_add_f32 v{Tm+16+i}, v{Tm+16+i}, v{Tm+24+i}")
        for i in range(8):
            a(f"v_add_f32 v{Tm+i}, v{Tm+i}, v{Tm+16+i}")
    dump(AD)
    def gate(k):
        gather(k, AD)
        for i in range(8):
            a(f"v_mul_f32 v{AD+8+i}, s48, v{AD+i}")
        for i in range(8):
            a(f"v_exp_f32 v{AD+8+i}, v{AD+8+i}")
        for i in range(8):
            a(f"v_add_f32 v{AD+8+i}, 1.0, v{AD+8+i}")
        for i in range(8):
            a(f"v_rcp_f32 v{AD+8+i}, v{AD+8+i}")
        for i in range(8):
            a(f"v_mul_f32 v{vG+8*k+i}, v{AD+i}, v{AD+8+i}")
    third(gate)
    a("s_barrier")
    dump(AS)
    a("s_waitcnt vmcnt(0)")
    def fin(k):
        gather(k, AD)
        for j in range(4):
            a(f"v_lshlrev_b32 v{AD+8+2*j}, 16, v{XR+4*k+j}", f"v_and_b32 v{AD+9+2*j}, 0xffff0000, v{XR+4*k+j}")
        for i in range(8):
            a(f"v_fmac_f32 v{AD+8+i}, v{AD+i}, v{vG+8*k+i}")
        for j in range(4):
            a(f"v_cvt_pk_bf16_f32 v{XR+4*k+j}, v{AD+8+2*j}, v{AD+9+2*j}")
        a(f"buffer_store_dwordx4 {vr(XR+4*k,4)}, v{vIt+3+k}, s[44:47], s{sT} offen")
    third(fin)
    a("L3_end:", "s_endpgm")


def build(extra_launch=0):
    a = Asm()
    head = open(f"cdna_kernels/{NAME}.s.ref").read().split("; Override launch geometry")[0]
    a.lines += head.strip().split("\n")
    a("; @launch kernel=ln_kernel grid=(128,1,1) block=(256,1,1) lds=0")
    a(f"; @launch kernel=gemm1_kernel grid=(256,1,1) block=(768,1,1) lds={WBASE+NW*WSLOT}")
    a(f"; @launch kernel=attn_kernel grid=(256,1,1) block=(768,1,1) lds={3*ASLOT}")
    a(f"; @launch kernel=tail_kernel grid=(256,1,1) block=(256,1,1) lds={RBASE+4*RW}")
    for _ in range(extra_launch):
        a("; @launch kernel=ln_kernel grid=(128,1,1) block=(256,1,1) lds=0")
    a('.amdgcn_target "amdgcn-amd-amdhsa--gfx950"', ".text")
    k0(a); k1(a); k2(a); k3(a)
    a('.section .rodata,"a"')
    t = a.text()
    for n, v in (("ln_kernel", 72), ("gemm1_kernel", 168), ("attn_kernel", 168), ("tail_kernel", 216)):
        t += ".p2align 6\n" + kernel_desc(n, v)
    return t

if __name__ == "__main__":
    out = sys.argv[1] if len(sys.argv) > 1 else f"cdna_kernels/{NAME}.s"
    extra = int(sys.argv[2]) if len(sys.argv) > 2 else 0
    open(out, "w").write(build(extra))
```
